```python
import torch

def _softmax(x, axis=-1):
    return torch.softmax(x, dim=axis)
def _gelu(x):
    return torch.nn.functional.gelu(x, approximate="tanh")
def _silu(x):
    return torch.nn.functional.silu(x)
def _sigmoid(x):
    return torch.sigmoid(x)
def _layernorm(x, axis=-1, eps=1e-5):
    m = x.mean(dim=axis, keepdim=True)
    v = x.var(dim=axis, keepdim=True, unbiased=False)
    return (x - m) / torch.sqrt(v + eps)
def _scatter_add(tgt, idx, src, axis=0):
    return tgt.clone().index_add_(axis, idx, src)
def _segment_sum(src, seg, n):
    out = torch.zeros((n,) + src.shape[1:], dtype=src.dtype)
    return out.index_add_(0, seg, src)
def _pad(x, pw):
    flat = tuple(v for pair in reversed(pw) for v in pair)
    return torch.nn.functional.pad(x, flat)

kernel_name = 'gated_mix__linear_attn_block__compressed_kv_cla__prompt'

def setup_inputs():

    _w = (lambda a: (lambda t: t.to(torch.bfloat16) if t.is_floating_point() else t)(torch.as_tensor(a)))
    def _A_setup():
        B, S, D = 1, 2048, 512
        return {
            "x": _w((lambda *s: torch.randn(*s, dtype=torch.bfloat16) * 0.05)(B, S, D)),
            "wqkv": _w((lambda *s: torch.randn(*s, dtype=torch.bfloat16) * 0.8)(D, 3 * D)),
            "wo": _w((lambda *s: torch.randn(*s, dtype=torch.bfloat16) * 0.4)(D, D)),
        }
    _A_in = _A_setup()

    def _B_setup():
        B, H, Sq, Sk, D, M = 1, 32, 2048, 2048, 128, 512
        Dc = 4 * D
        return {
            "x": _w((lambda *s: torch.randn(*s, dtype=torch.bfloat16) * 0.05)(B, Sq, M)),
            "c_kv": _w((lambda *s: torch.randn(*s, dtype=torch.bfloat16) * 0.8)(B, Sk, Dc)),
            "w_q": _w((lambda *s: torch.randn(*s, dtype=torch.bfloat16) * 6.4)(M, H, D) * (M ** -0.5)),
            "w_uk": _w((lambda *s: torch.randn(*s, dtype=torch.bfloat16) * 6.4)(Dc, H, D) * (Dc ** -0.5)),
            "w_uv": _w((lambda *s: torch.randn(*s, dtype=torch.bfloat16) * 0.8)(Dc, H, D) * (Dc ** -0.5)),
            "w_o": _w((lambda *s: torch.randn(*s, dtype=torch.bfloat16) * 0.8)(H, D, M) * ((H * D) ** -0.5)),
        }
    _B_in = _B_setup()

    return {
        "A_x": _A_in["x"],
        "A_wqkv": _A_in["wqkv"],
        "A_wo": _A_in["wo"],
        "B_x": _B_in["x"],
        "B_c_kv": _B_in["c_kv"],
        "B_w_q": _B_in["w_q"],
        "B_w_uk": _B_in["w_uk"],
        "B_w_uv": _B_in["w_uv"],
        "B_w_o": _B_in["w_o"],
        "gate_w": _w((lambda *s: torch.randn(*s, dtype=torch.bfloat16) * 0.05)(512) * 16.0),
    }

def reference(A_x, A_wqkv, A_wo, B_x, B_c_kv, B_w_q, B_w_uk, B_w_uv, B_w_o, gate_w):
    def _A_ref(x, wqkv, wo):
        B, S, D = x.shape
        H = 32; Dh = D // H
        qkv = (lambda x, *d: x.permute(*d))((x @ wqkv).reshape(B, S, 3, H, Dh), 2, 0, 3, 1, 4)
        q, k, v = qkv[0], qkv[1], qkv[2]
        phi = lambda t: torch.where(t > 0, t + 1, torch.exp(t)) + 1e-6
        pq, pk = phi(q), phi(k)
        kv = torch.einsum("bhsd,bhse->bhde", pk, v)
        z = torch.einsum("bhsd->bhd", pk)
        num = torch.einsum("bhqd,bhde->bhqe", pq, kv)
        den = torch.einsum("bhqd,bhd->bhq", pq, z)[..., None] + 1e-6
        o = num / den
        return (lambda x, *d: x.permute(*d))(o, 0, 2, 1, 3).reshape(B, S, D) @ wo

    def _B_ref(x, c_kv, w_q, w_uk, w_uv, w_o):
        B, Sq, M = x.shape[0], x.shape[1], x.shape[2]
        Sk = c_kv.shape[1]
        H, D = w_q.shape[1], w_q.shape[2]
        q = torch.einsum("bqm,mhd->bhqd", x, w_q)
        k = torch.einsum("bkc,chd->bhkd", c_kv, w_uk)
        v = torch.einsum("bkc,chd->bhkd", c_kv, w_uv)
        scores = torch.einsum("bhqd,bhkd->bhqk", q, k) * (D ** -0.5)
        off = Sk - Sq
        qi = torch.arange(Sq)[:, None]
        kj = torch.arange(Sk)[None, :]
        cmask = kj <= (qi + off)
        scores = torch.where(cmask[None, None], scores, -1e9)
        p = _softmax(scores, axis=-1)
        ctx = torch.einsum("bhqk,bhkd->bhqd", p, v)
        return torch.einsum("bhqd,hdm->bqm", ctx, w_o)

    x = A_x
    g = _sigmoid((x * gate_w).sum(-1, keepdims=True))
    a = _A_ref(x, A_wqkv, A_wo)
    b = _B_ref(x, B_c_kv, B_w_q, B_w_uk, B_w_uv, B_w_o)
    return g * a + (1 - g) * b
```

```python
import re

def v(i, n=1):
    return f"v{i}" if n == 1 else f"v[{i}:{i+n-1}]"
def s(i, n=1):
    return f"s{i}" if n == 1 else f"s[{i}:{i+n-1}]"
def a(i, n=1):
    return f"a{i}" if n == 1 else f"a[{i}:{i+n-1}]"

class Kernel:
    def __init__(self, name, grid, block, lds, vgpr=256, sgpr=102, accum=None):
        self.name = name; self.grid = grid; self.block = block; self.lds = lds
        self.vgpr = vgpr; self.sgpr = sgpr; self.accum = accum
        self.lines = []
        self._uid = 0
    def e(self, *ins):
        for x in ins:
            if isinstance(x, (list, tuple)):
                self.e(*x)
            else:
                self.lines.append("    " + x)
    def c(self, text):
        self.lines.append("    ; " + text)
    def label(self, name):
        self.lines.append(f"{name}:")
    def newlabel(self, base="L"):
        self._uid += 1
        return f"{self.name[:-7]}_{base}_{self._uid}"
    def align(self, p):
        self.lines.append(f"    .p2align {p}")
    def text(self):
        hdr = [f".globl {self.name}", ".p2align 8", f".type {self.name},@function", f"{self.name}:"]
        return "\n".join(hdr + self.lines) + "\n"
    def desc(self):
        acc = self.accum if self.accum is not None else min(256, (self.vgpr + 3) // 4 * 4)
        return "\n".join([
            ".p2align 6",
            f".amdhsa_kernel {self.name}",
            f"  .amdhsa_next_free_vgpr {self.vgpr}",
            f"  .amdhsa_next_free_sgpr {self.sgpr}",
            f"  .amdhsa_accum_offset {acc}",
            "  .amdhsa_group_segment_fixed_size 0",
            "  .amdhsa_kernarg_size 104",
            "  .amdhsa_user_sgpr_count 2",
            "  .amdhsa_user_sgpr_kernarg_segment_ptr 1",
            "  .amdhsa_system_sgpr_workgroup_id_x 1",
            "  .amdhsa_float_denorm_mode_32 3",
            "  .amdhsa_float_denorm_mode_16_64 3",
            ".end_amdhsa_kernel"]) + "\n"

def make_file(kernels, launches=None, header=""):
    launches = launches or kernels
    out = []
    if header:
        out.append(header.rstrip("\n"))
    for k in launches:
        g, b = k.grid, k.block
        out.append(f"; @launch kernel={k.name} grid=({g[0]},{g[1]},{g[2]}) block=({b[0]},{b[1]},{b[2]}) lds={k.lds}")
    out.append('.amdgcn_target "amdgcn-amd-amdhsa--gfx950"')
    out.append(".text")
    for k in kernels:
        out.append(k.text())
    out.append('.section .rodata,"a"')
    for k in kernels:
        out.append(k.desc())
    return "\n".join(out)

_reg = re.compile(r"\b([vsa])(\d+)\b|\b([vsa])\[(\d+):(\d+)\]|\b(vcc|exec|m0|scc)\b")
def regs_of(tok):
    out = set()
    for m in _reg.finditer(tok):
        if m.group(1):
            out.add(m.group(1) + m.group(2))
        elif m.group(3):
            for i in range(int(m.group(4)), int(m.group(5)) + 1):
                out.add(m.group(3) + str(i))
        else:
            out.add(m.group(6))
    return out

TRANS = ("v_exp_f32", "v_log_f32", "v_rcp_f32", "v_rsq_f32", "v_sqrt_f32", "v_sin_f32", "v_cos_f32", "v_rcp_iflag_f32")

class Ins:
    __slots__ = ("text", "op", "ops", "w", "r", "kind", "idx", "target", "srcc", "srcab", "passes", "line")
    def __init__(self, text, idx):
        self.text = text; self.idx = idx
        t = text.split(";")[0].strip()
        parts = t.split(None, 1)
        self.op = parts[0]
        rest = parts[1] if len(parts) > 1 else ""
        self.ops = [x.strip() for x in rest.split(",")] if rest else []
        self.w = set(); self.r = set(); self.target = None; self.srcc = set(); self.srcab = set(); self.passes = 0
        op = self.op; o = self.ops
        R = regs_of
        if op.startswith("v_mfma"):
            self.kind = "mfma"
            self.w = R(o[0]); self.srcab = R(o[1]) | R(o[2]); self.srcc = R(o[3].split()[0]); self.r = self.srcab | self.srcc
            self.passes = 8 if "32x32" in op else 4
        elif op.startswith("v_cmp"):
            self.kind = "valu"; self.w = R(o[0]); self.r = set().union(*[R(x) for x in o[1:]])
            if op.startswith("v_cmpx"): self.w.add("exec")
        elif op.startswith("v_readfirstlane") or op.startswith("v_readlane"):
            self.kind = "valu"; self.w = R(o[0]); self.r = set().union(*[R(x) for x in o[1:]])
        elif op.startswith("v_permlane"):
            self.kind = "valu"; self.w = R(o[0]) | R(o[1]); self.r = set(self.w)
        elif op.startswith("v_"):
            self.kind = "valu"
            if op == "v_nop":
                pass
            else:
                self.w = R(o[0]); srcs = o[1:]
                if op.startswith(("v_add_co", "v_sub_co", "v_addc_co", "v_subb_co", "v_subrev_co", "v_div_scale", "v_mad_u64")):
                    self.w |= R(o[1]); srcs = o[2:]
                self.r = set().union(*[R(x) for x in srcs]) if srcs else set()
                if op.startswith(("v_fmac", "v_dot2c", "v_pk_fmac", "v_writelane")): self.r |= R(o[0])
                if op.startswith("v_cndmask") and len(o) == 3: self.r.add("vcc")
        elif op.startswith("ds_"):
            self.kind = "lds"
            if op.startswith(("ds_read", "ds_bpermute", "ds_permute", "ds_swizzle")):
                self.w = R(o[0]); self.r = set().union(*[R(x.split()[0]) for x in o[1:]])
            else:
                self.r = set().union(*[R(x.split()[0]) for x in o])
        elif op.startswith(("buffer_", "global_", "flat_")):
            self.kind = "vmem"
            is_lds = " lds" in t or "_lds_" in op
            if op.startswith(("buffer_wbl2", "buffer_inv")):
                pass
            elif "load" in op and not is_lds:
                self.w = R(o[0]); self.r = set().union(*[R(x.split()[0]) for x in o[1:]])
            elif "atomic" in op and " sc0" in t:
                if op.startswith("buffer"):
                    self.w = R(o[0]); self.r = set().union(*[R(x.split()[0]) for x in o])
                else:
                    self.w = R(o[0]); self.r = set().union(*[R(x.split()[0]) for x in o[1:]])
            else:
                self.r = set().union(*[R(x.split()[0]) for x in o])
                if is_lds: self.r.add("m0")
        elif op.startswith(("s_load", "s_buffer_load", "s_memtime", "s_memrealtime", "s_atomic")):
            self.kind = "smem"; self.w = R(o[0]); self.r = set().union(*[R(x) for x in o[1:]]) if len(o) > 1 else set()
        elif op.startswith("s_"):
            self.kind = "salu"
            if op.startswith(("s_branch", "s_cbranch")):
                self.target = o[0]
                if "vcc" in op: self.r.add("vcc")
                if "exec" in op: self.r.add("exec")
            elif op.startswith(("s_waitcnt", "s_nop", "s_barrier", "s_endpgm", "s_setprio", "s_sleep")):
                pass
            elif op.startswith(("s_cmp", "s_bitcmp")):
                self.r = set().union(*[R(x) for x in o])
            else:
                self.w = R(o[0]); self.r = set().union(*[R(x) for x in o[1:]]) if len(o) > 1 else set()
                if "saveexec" in op: self.w.add("exec")
        else:
            raise ValueError("unknown instr " + text)
    def ws(self):
        if self.op == "s_nop":
            return int(self.ops[0], 0) + 1
        return 1

def parse(kernel):
    ins = []; labels = {}
    for ln in kernel.lines:
        t = ln.split(";")[0].strip()
        if not t or t.startswith("."):
            continue
        if t.endswith(":"):
            labels[t[:-1]] = len(ins); continue
        ins.append(Ins(t, len(ins)))
    succ = [[] for _ in ins]; pred = [[] for _ in ins]
    for i, x in enumerate(ins):
        if x.op == "s_endpgm": continue
        if x.target is not None:
            succ[i].append(labels[x.target])
            if x.op != "s_branch" and i + 1 < len(ins): succ[i].append(i + 1)
        elif i + 1 < len(ins):
            succ[i].append(i + 1)
    for i, ss in enumerate(succ):
        for j in ss: pred[j].append(i)
    return ins, succ, pred

def need(p, c):
    n = 0
    vs = lambda S: {x for x in S if x[0] in "va" and x not in ("vcc",)}
    sg = lambda S: {x for x in S if x[0] == "s" or x == "vcc"}
    if p.kind == "mfma":
        D = p.w
        t = {8: (10, 12, 12, 7), 4: (6, 8, 8, 3)}[p.passes]
        if c.kind == "mfma":
            if c.srcc & D and not (c.srcc == D and c.passes == p.passes): n = max(n, t[0])
            if c.srcab & D: n = max(n, t[1])
            if c.w & D and not (c.w == D and c.passes == p.passes): n = max(n, t[0])
        elif c.kind in ("valu", "lds", "vmem"):
            if (c.r | c.w) & D: n = max(n, t[2])
            if c.kind == "valu" and c.w & p.srcc: n = max(n, t[3])
            if c.kind in ("lds", "vmem") and c.w & p.srcc: n = max(n, t[3])
    if p.kind == "valu":
        if c.kind == "mfma" and vs(p.w) & c.r: n = max(n, 2)
        if c.kind == "mfma" and "exec" in p.w: n = max(n, 4)
        if p.op.startswith(TRANS) and c.kind in ("valu", "mfma") and not c.op.startswith(TRANS) and p.w & c.r: n = max(n, 1)
        if sg(p.w):
            if c.kind == "valu" and sg(p.w) & c.r:
                n = max(n, 4 if c.op.startswith(("v_readlane", "v_writelane", "v_div_fmas")) else 2)
            if c.kind == "vmem" and sg(p.w) & c.r: n = max(n, 5)
            if c.kind == "salu" and c.op.startswith("s_cbranch_vcc") and "vcc" in p.w: n = max(n, 0)
        if c.op.startswith(("v_readfirstlane", "v_readlane")) and vs(p.w) & c.r: n = max(n, 1)
        if c.op.startswith("v_permlane") and vs(p.w) & c.r: n = max(n, 2)
        if c.kind == "valu" and ("dpp" in c.text or "row_" in c.text or "quad_perm" in c.text) and vs(p.w) & c.r: n = max(n, 2)
        if "exec" in p.w and c.kind == "valu" and ("row_" in c.text or "quad_perm" in c.text): n = max(n, 5)
        if "exec" in p.w and c.op.startswith(("v_readfirstlane", "v_readlane", "v_writelane", "v_permlane")): n = max(n, 4)
        if ("op_sel" in p.text or "sdwa" in p.text) and c.kind == "valu" and p.w & (c.r | c.w): n = max(n, 1)
    if p.kind == "salu" and "m0" in p.w and "m0" in c.r and c.kind in ("vmem", "lds"): n = max(n, 1)
    if p.kind == "vmem" and ("store" in p.op) and (p.op.endswith("x4") or p.op.endswith("x3")):
        data = regs_of(p.ops[0]) if p.op.startswith("buffer") else regs_of(p.ops[1])
        if c.w & data: n = max(n, 2 if c.kind == "valu" else 1)
    if p.kind == "lds" and p.op.startswith("ds_write") and c.kind == "valu" and c.w & p.r and p.op.endswith(("b128", "b96")):
        n = max(n, 0)
    return n

def check_hazards(kernel, maxlook=13):
    ins, succ, pred = parse(kernel)
    bad = []
    for c in ins:
        if c.kind in ("salu",) and not c.r: continue
        stack = [(p, 0) for p in pred[c.idx]]
        seen = {}
        while stack:
            pi, dist = stack.pop()
            if seen.get(pi, 99) <= dist: continue
            seen[pi] = dist
            p = ins[pi]
            n = need(p, c)
            if n > dist:
                bad.append((p, c, n, dist))
            d2 = dist + p.ws()
            if d2 < maxlook:
                for q in pred[pi]: stack.append((q, d2))
    for p, c, n, d in bad[:40]:
        print(f"HAZARD {kernel.name}: need {n} have {d}: [{p.idx}] {p.text}  ->  [{c.idx}] {c.text}")
    return len(bad)

def check_waits(kernel, maxstates=400000):
    ins, succ, pred = parse(kernel)
    bad = {}
    start = (0, (), (), frozenset())
    seen = {start}; stack = [start]
    while stack:
        pc, lg, vm, sm = stack.pop()
        x = ins[pc]
        touched = x.r | x.w
        pend_l = set().union(*lg) if lg else set()
        pend_v = set().union(*vm) if vm else set()
        if x.kind == "lds" and x.w:
            hit = (x.r & (pend_l | pend_v | sm)) | (x.w & pend_v)
        elif x.kind == "vmem" and x.w:
            hit = (x.r & (pend_l | pend_v | sm)) | (x.w & pend_l)
        else:
            hit = touched & (pend_l | pend_v | sm)
        if hit and pc not in bad:
            bad[pc] = hit
        if x.op == "s_waitcnt":
            t = x.text
            m = re.search(r"vmcnt\((\d+)\)", t)
            if m:
                n = int(m.group(1)); vm = vm[len(vm) - n:] if n < len(vm) else vm
                if n == 0: vm = ()
            m = re.search(r"lgkmcnt\((\d+)\)", t)
            if m:
                n = int(m.group(1))
                if n == 0: lg = (); sm = frozenset()
                elif not sm:
                    lg = lg[len(lg) - n:] if n < len(lg) else lg
        elif x.kind == "lds":
            lg = lg + (frozenset(x.w),)
            if len(lg) > 40: lg = lg[-40:]
        elif x.kind == "vmem" and not x.op.startswith(("buffer_wbl2", "buffer_inv")):
            vm = vm + (frozenset(x.w),)
            if len(vm) > 70: vm = vm[-70:]
        elif x.kind == "smem":
            sm = sm | x.w
        while lg and not lg[0]: lg = lg[1:]
        while vm and not vm[0]: vm = vm[1:]
        for nx in succ[pc]:
            st = (nx, lg, vm, sm)
            if st not in seen:
                seen.add(st); stack.append(st)
                if len(seen) > maxstates:
                    print("check_waits: state limit reached"); stack = []; break
    for pc, hit in sorted(bad.items())[:40]:
        print(f"WAIT {kernel.name}: [{pc}] {ins[pc].text} touches pending {sorted(hit)[:6]}")
    return len(bad)
```

```python
import sys, math, copy
sys.path.insert(0, "dev")
from asmgen import *

NAME = "gated_mix__linear_attn_block__compressed_kv_cla__prompt"
WS_KV = 0
WS_Y = 32 << 20
Y_RB = 144 * 1024
WS_P = 52 << 20
WS_G = 53 << 20
QSCALE = math.log2(math.e) / math.sqrt(128.0)
LOG2E = math.log2(math.e)
SPIN_MAX = 1 << 20

import struct
def f32(x):
    return "0x%08x" % struct.unpack("<I", struct.pack("<f", x))[0]

def mf(d, a_, b_, c=None):
    cs = v(d, 4) if c is None else (c if isinstance(c, str) else v(c, 4))
    return f"v_mfma_f32_16x16x32_bf16 {v(d,4)}, {v(a_,4)}, {v(b_,4)}, {cs}"

class VM:
    def __init__(self): self.q = []
    def issue(self, tag, n=1): self.q += [tag] * n
    def wait(self, tags):
        last = -1
        for i, t in enumerate(self.q):
            if t in tags: last = i
        self.q = self.q[last + 1:]
        return len(self.q)

def cost(ins):
    if isinstance(ins, (list, tuple)): return sum(cost(x) for x in ins)
    if ins.startswith(TRANS): return 2
    return 1

def spread(gaps, items, g0, g1):
    tot = sum(cost(x) for x in items)
    if tot == 0: return
    n = g1 - g0
    acc = 0.0
    for it in items:
        c = cost(it)
        gi = g0 + min(n - 1, int((acc + 0.5 * c) * n / tot))
        gaps[gi].append(it)
        acc += c

def emit_gaps(k, anchors, gaps, pre=None):
    for i, m in enumerate(anchors):
        if pre and i in pre: k.e(pre[i])
        k.e(m)
        k.e(gaps[i])

def srd(k, d, lo, hi, size, off=None):
    if off is None:
        k.e(f"s_mov_b32 s{d}, s{lo}", f"s_mov_b32 s{d+1}, s{hi}")
    else:
        k.e(f"s_add_u32 s{d}, s{lo}, {off}", f"s_addc_u32 s{d+1}, s{hi}, 0")
    k.e(f"s_mov_b32 s{d+2}, {size}", f"s_mov_b32 s{d+3}, 0x20000")

def round_bf16_pair(k, a0, a1, t):
    k.e(f"v_cvt_pk_bf16_f32 v{t}, v{a0}, v{a1}", f"v_lshlrev_b32 v{a0}, 16, v{t}", f"v_and_b32 v{a1}, 0xffff0000, v{t}")

def xgroup(k, op, x, t):
    k.e(f"v_mov_b32 v{t}, v{x}", "s_nop 1", f"v_permlane16_swap_b32 v{x}, v{t}", "s_nop 1", f"{op} v{x}, v{x}, v{t}",
        f"v_mov_b32 v{t}, v{x}", "s_nop 1", f"v_permlane32_swap_b32 v{x}, v{t}", "s_nop 1", f"{op} v{x}, v{x}, v{t}")

def gen_main(opt):
    k = Kernel("fmain_kernel", (256, 1, 1), (512, 1, 1), 163840, vgpr=256, sgpr=100)
    e = k.e
    sX, sWQKV, sCKV, sWQ, sWUK, sWUV, sGATE, sDBG, sWS = 4, 6, 8, 10, 12, 14, 16, 18, 20
    sW, sH, sP, sROW, sN, sNT, sT, sROLE, sROWP = 22, 23, 24, 25, 26, 27, 28, 29, 30
    dC, dX, dW1, dW2, dKV, dKVS, dY, dM, dD = 32, 36, 40, 44, 48, 52, 56, 60, 64
    sM0A, sM0W, sW2S, sW2O, sOFF, sKST = 68, 69, 70, 71, 72, 73
    t0, t1, t2, t3 = 76, 77, 78, 79
    sMSK = 80
    vL16 = 255
    vA = [228, 229, 230, 231]
    vW = list(range(232, 240))
    vDA = [240, 241, 242, 243]
    vDW1 = [244, 245]
    vDW2 = [246, 247]
    vA2 = [248, 249, 250, 251]
    vI16, vG = 252, 253
    vFL = 254
    LW = 98304

    e("s_cmp_ge_u32 s2, 256", "s_cbranch_scc1 fmain_end")
    e("s_load_dwordx4 s[4:7], s[0:1], 0", "s_load_dwordx4 s[8:11], s[0:1], 32", "s_load_dwordx4 s[12:15], s[0:1], 48",
      "s_load_dwordx2 s[16:17], s[0:1], 72", "s_load_dwordx2 s[18:19], s[0:1], 88", "s_load_dwordx2 s[20:21], s[0:1], 96")
    e("v_lshrrev_b32 v1, 6, v0", "v_and_b32 v0, 63, v0", f"v_readfirstlane_b32 s{sW}, v1")
    e(f"v_lshlrev_b32 v{vL16}, 4, v0", f"v_and_b32 v{vI16}, 15, v0", f"v_lshrrev_b32 v{vG}, 4, v0")
    e(f"s_and_b32 s{sH}, s2, 7", f"s_lshl_b32 s{sH}, s{sH}, 2", f"s_lshr_b32 s{t0}, s2, 6", f"s_add_u32 s{sH}, s{sH}, s{t0}",
      f"s_lshr_b32 s{sP}, s2, 3", f"s_and_b32 s{sP}, s{sP}, 7")
    e(f"s_lshr_b32 s{sROLE}, s{sW}, 2")
    e(f"s_sub_u32 s{t0}, 15, s{sP}", f"s_cmp_eq_u32 s{sROLE}, 0", f"s_cselect_b32 s{t1}, s{sP}, s{t0}",
      f"s_and_b32 s{t2}, s{sW}, 3", f"s_lshl_b32 s{t3}, s{t2}, 5",
      f"s_lshl_b32 s{sROW}, s{t1}, 7", f"s_add_u32 s{sROW}, s{sROW}, s{t3}",
      f"s_lshl_b32 s{sROWP}, s{t0}, 7", f"s_add_u32 s{sROWP}, s{sROWP}, s{t3}",
      f"s_lshl_b32 s{sN}, s{t1}, 1", f"s_lshr_b32 s{t2}, s{t2}, 1", f"s_add_u32 s{sN}, s{sN}, s{t2}", f"s_add_u32 s{sN}, s{sN}, 1",
      f"s_lshl_b32 s{sNT}, s{sP}, 1", f"s_sub_u32 s{sNT}, 32, s{sNT}")
    e("v_lshrrev_b32 v2, 3, v0", "v_lshlrev_b32 v2, 10, v2", "v_and_b32 v3, 7, v0")
    e(f"v_xor_b32 v4, v3, v{vG}", "v_xor_b32 v5, 4, v4", "v_lshl_add_u32 v4, v4, 4, v2", "v_lshl_add_u32 v5, v5, 4, v2")
    e(f"v_mov_b32 v{vDA[0]}, v4", f"v_add_u32 v{vDA[1]}, {7*1024}, v5", f"v_add_u32 v{vDA[2]}, {14*1024}, v4", f"v_add_u32 v{vDA[3]}, {21*1024}, v5")
    e(f"s_and_b32 s{t0}, s{sW}, 3", f"s_and_b32 s{t1}, s{sW}, 1", f"s_lshl_b32 s{t1}, s{t1}, 2", f"s_lshl_b32 s{t2}, s{t0}, 3")
    e(f"v_or_b32 v2, s{t1}, v{vG}", f"v_lshrrev_b32 v3, 1, v{vI16}", "v_xor_b32 v2, v2, v3",
      f"v_and_b32 v3, 1, v{vI16}", "v_lshlrev_b32 v3, 4, v3",
      f"v_add_u32 v4, s{t2}, v{vG}")
    e("v_lshl_add_u32 v5, v2, 5, v3", "v_lshl_add_u32 v5, v4, 13, v5")
    e(f"v_mov_b32 v{vDW1[0]}, v5", f"v_add_u32 v{vDW1[1]}, {4*8192-1024}, v5")
    e("v_mul_u32_u24 v6, 3072, v4", "v_lshl_add_u32 v6, v2, 10, v6", "v_add_u32 v6, v6, v3",
      "v_cmp_gt_u32 vcc, 3, v2", "v_mov_b32 v7, 0x7fff0000", f"v_add_u32 v8, {4*3072-1024}, v6",
      "v_cndmask_b32 v6, v7, v6, vcc", "v_cndmask_b32 v8, v7, v8, vcc")
    e(f"s_cmp_eq_u32 s{sROLE}, 0", "s_cselect_b64 vcc, -1, 0", "s_nop 1",
      f"v_cndmask_b32 v{vDW2[0]}, v6, v{vDW1[0]}, vcc", f"v_cndmask_b32 v{vDW2[1]}, v8, v{vDW1[1]}, vcc")
    e(f"s_mov_b32 s{sW2S}, {32*3072}", f"s_cselect_b32 s{sW2S}, {32*8192}, s{sW2S}")
    e(f"s_lshl_b32 s{sM0A}, s{sW}, 12")
    e(f"s_lshl_b32 s{sM0W}, s{sW}, 11", f"s_add_u32 s{sM0W}, s{sM0W}, {LW}")
    e("s_waitcnt lgkmcnt(0)")
    e(f"s_lshl_b32 s{t0}, s{sP}, 18", f"s_lshl_b32 s{t1}, s{sW}, 15", f"s_add_u32 s{t0}, s{t0}, s{t1}")
    srd(k, dC, sCKV, sCKV + 1, 32768, f"s{t0}")
    e(f"s_lshl_b32 s{t0}, s{sROW}, 10")
    srd(k, dX, sX, sX + 1, 32768, f"s{t0}")
    e(f"s_lshl_b32 s{t0}, s{sH}, 8", f"s_cmp_eq_u32 s{sROLE}, 0",
      f"s_cselect_b32 s{t1}, s{sWUK}, s{sWUV}", f"s_cselect_b32 s{t2}, s{sWUK+1}, s{sWUV+1}", f"s_sub_u32 s{t3}, {4<<20}, s{t0}")
    srd(k, dW1, t1, t2, f"s{t3}", f"s{t0}")
    vm = VM()
    def dma_act(st, half):
        d = dC if st < 8 else dX
        out = [f"s_add_u32 m0, s{sM0A}, {(st % 3) * 32768}", f"s_movk_i32 s{t0}, {(st % 8) * 128}"]
        for i in (2 * half, 2 * half + 1):
            out.append(f"buffer_load_dwordx4 v{vDA[i]}, {s(d,4)}, s{t0} offen offset:{i*1024} lds")
        vm.issue(("A", st), 2)
        return out
    def dma_w(u):
        out = [f"s_add_u32 m0, s{sM0W}, {(u % 4) * 16384}"]
        if u < 16:
            out.append(f"s_mov_b32 s{t1}, {u * 262144}")
            for i in range(2):
                out.append(f"buffer_load_dwordx4 v{vDW1[i]}, {s(dW1,4)}, s{t1} offen offset:{i*1024} lds")
        else:
            out.append(f"s_mul_i32 s{t1}, s{sW2S}, {u - 16}")
            for i in range(2):
                out.append(f"buffer_load_dwordx4 v{vDW2[i]}, {s(dW2,4)}, s{t1} offen offset:{i*1024} lds")
        vm.issue(("W", u), 2)
        return out
    e(dma_act(0, 0), dma_act(0, 1), dma_w(0), dma_w(1))
    e(f"s_lshl_b32 s{t0}, s{sH}, 8", f"s_lshl_b32 s{t1}, s{sH}, 5", f"s_cmp_eq_u32 s{sROLE}, 0", f"s_cselect_b32 s{t0}, s{t0}, s{t1}",
      f"s_cselect_b32 s{t1}, s{sWQ}, s{sWQKV}", f"s_cselect_b32 s{t2}, s{sWQ+1}, s{sWQKV+1}",
      f"s_mov_b32 s{t3}, {512*3072}", f"s_cselect_b32 s{t3}, {4<<20}, s{t3}", f"s_sub_u32 s{t3}, s{t3}, s{t0}")
    srd(k, dW2, t1, t2, f"s{t3}", f"s{t0}")
    e(dma_act(1, 0), dma_act(1, 1), dma_w(2), dma_w(3), dma_act(2, 0), dma_act(2, 1))
    e(f"s_lshl_b32 s{t0}, s{sH}, 20", f"s_lshl_b32 s{t1}, s{sNT}, 15")
    srd(k, dKV, sWS, sWS + 1, f"s{t1}", f"s{t0}")
    srd(k, dKVS, sWS, sWS + 1, 1 << 20, f"s{t0}")
    srd(k, dY, sWS, sWS + 1, 128 * Y_RB, WS_Y)
    srd(k, dM, sWS, sWS + 1, (1 << 20) + 8192, WS_P)
    srd(k, dD, sDBG, sDBG + 1, 256)
    e(f"s_lshl_b32 s{t0}, s2, 3", f"s_add_u32 s{t0}, s{t0}, s{sW}", f"s_lshl_b32 s{t1}, s{t0}, 10",
      f"s_add_u32 s{t2}, s{sX}, s{t1}", f"s_addc_u32 s{t3}, s{sX+1}, 0")
    e(f"global_load_dwordx4 v[8:11], v{vL16}, s[{t2}:{t3}]", f"global_load_dwordx4 v[12:15], v{vL16}, s[{sGATE}:{sGATE+1}]")
    vm.issue("gate", 2)
    e(f"s_lshl_b32 s{sKST}, s{t0}, 2")
    e(f"v_lshrrev_b32 v2, 1, v{vI16}", f"v_xor_b32 v2, v2, v{vG}", "v_lshlrev_b32 v2, 4, v2", f"v_lshl_add_u32 v2, v{vI16}, 7, v2")
    e(f"s_lshr_b32 s{t0}, s{sW}, 1", f"s_and_b32 s{t0}, s{t0}, 1", f"s_lshl_b32 s{t0}, s{t0}, 14")
    e(f"v_add_u32 v{vA[0]}, s{t0}, v2", f"v_xor_b32 v{vA[1]}, 64, v{vA[0]}",
      f"v_add_u32 v{vA[2]}, 0x10000, v{vA[0]}", f"v_add_u32 v{vA[3]}, 0x10000, v{vA[1]}")
    e(f"v_add_u32 v{vA2[0]}, s{sM0A}, v2", f"v_xor_b32 v{vA2[1]}, 64, v{vA2[0]}",
      f"v_add_u32 v{vA2[2]}, 0x10000, v{vA2[0]}", f"v_add_u32 v{vA2[3]}, 0x10000, v{vA2[1]}")
    e(f"v_lshrrev_b32 v2, 2, v{vI16}", f"v_lshl_add_u32 v3, v{vG}, 3, v2", "v_lshlrev_b32 v3, 8, v3",
      f"v_and_b32 v4, 1, v{vG}", "v_lshl_or_b32 v4, v4, 2, v2", "v_lshl_add_u32 v3, v4, 5, v3",
      f"v_and_b32 v4, 3, v{vI16}", "v_lshl_add_u32 v3, v4, 3, v3", f"v_add_u32 v{vFL}, {LW}, v3")
    e(f"s_and_b32 s{t0}, s{sW}, 1", f"s_lshl_b32 s{t0}, s{t0}, 7", f"s_lshl_b32 s{t1}, s{sROLE}, 13")
    e(f"v_xor_b32 v3, s{t0}, v{vFL}", f"v_add_u32 v3, s{t1}, v3")
    for i in range(4):
        e(f"v_xor_b32 v{vW[4+i]}, {i*32}, v3")
    for i in range(4):
        e(f"v_xor_b32 v{vW[i]}, {i*32}, v{vFL}")

    n = vm.wait({"gate"})
    e(f"s_waitcnt vmcnt({n})")
    e("v_mov_b32 v16, 0")
    for i in range(4):
        e(f"v_lshlrev_b32 v2, 16, v{8+i}", f"v_and_b32 v3, 0xffff0000, v{8+i}", f"v_lshlrev_b32 v4, 16, v{12+i}", f"v_and_b32 v5, 0xffff0000, v{12+i}",
          "v_mul_f32 v2, v2, v4", "v_mul_f32 v3, v3, v5")
        round_bf16_pair(k, 2, 3, 4)
        e("v_add_f32 v16, v16, v2", "v_add_f32 v16, v16, v3")
    for r in (8, 4, 2, 1):
        e("s_nop 1", f"v_add_f32 v16, v16, v16 row_ror:{r}")
    xgroup(k, "v_add_f32", 16, 17)
    e("v_cvt_pk_bf16_f32 v16, v16, v16", "v_lshlrev_b32 v16, 16, v16", f"v_mul_f32 v16, {f32(-LOG2E)}, v16", "v_exp_f32 v16, v16", "s_nop 0",
      "v_add_f32 v16, 1.0, v16", "v_rcp_f32 v16, v16", "s_nop 0", "v_cvt_pk_bf16_f32 v16, v16, v16", "v_lshlrev_b32 v16, 16, v16",
      f"v_mov_b32 v17, {WS_G - WS_P}")
    e("s_mov_b64 exec, 1", f"buffer_store_dword v16, v17, {s(dM,4)}, s{sKST} offen", "s_mov_b64 exec, -1")
    vm.issue("gst", 1)

    P1C = [[128 + 4 * i for i in range(8)], [180 + 4 * i for i in range(8)]]
    P1W = [[160 + 4 * i for i in range(4)], [212 + 4 * i for i in range(4)]]
    q0 = [128 + 4 * i for i in range(13)]
    q1 = [88 + 4 * i for i in range(10)] + [180 + 4 * i for i in range(3)]
    P2X = [q0[:2], q1[:2]]
    P2W = [q0[2:], q1[2:]]
    def reads(u):
        st = u >> 1; ks = u & 1; slot = st % 3; cur = u & 1
        out = []
        if u < 16:
            for i in range(4):
                for j in range(2):
                    out.append(f"ds_read_b64_tr_b16 {v(P1W[cur][i]+2*j,2)}, v{vW[4+i]} offset:{(u%4)*16384 + j*1024}")
            for sb in range(8):
                ad = vA[ks + (2 if slot == 2 else 0)]
                out.append(f"ds_read_b128 {v(P1C[cur][sb],4)}, v{ad} offset:{(slot%2 if slot < 2 else 0)*32768 + sb*2048}")
        else:
            for sb in range(2):
                ad = vA2[ks + (2 if slot == 2 else 0)]
                out.append(f"ds_read_b128 {v(P2X[cur][sb],4)}, v{ad} offset:{(slot%2 if slot < 2 else 0)*32768 + sb*2048}")
            for i in range(11):
                for j in range(2):
                    out.append(f"ds_read_b64_tr_b16 {v(P2W[cur][i]+2*j,2)}, v{vW[i%8]} offset:{(u%4)*16384 + (i//8)*8192 + j*1024}")
        return out
    def step_dmas(u):
        out = []
        if u + 4 < 32: out.append(dma_w(u + 4))
        if u % 2 == 1:
            st = (u - 1) // 2 + 3
            if st < 16: out.append(dma_act(st, 0))
        elif u >= 2:
            st = (u - 2) // 2 + 3
            if st < 16: out.append(dma_act(st, 1))
        return out
    def boundary(u, extra=()):
        need = {("W", u + 1), ("A", (u + 1) >> 1)} | set(extra)
        n = vm.wait(need)
        e(f"s_waitcnt vmcnt({n}) lgkmcnt(0)", "s_barrier")

    n = vm.wait({("W", 0), ("A", 0)})
    e(f"s_waitcnt vmcnt({n})", "s_barrier")
    e(reads(0))
    e(f"s_cmp_eq_u32 s{sROLE}, 1", "s_cbranch_scc1 fmain_p1v")
    ACC = lambda sb, nb: (sb * 4 + nb) * 4
    vm_save = copy.deepcopy(vm.q)
    for mat in (0, 1):
        vm.q = copy.deepcopy(vm_save)
        if mat == 1: k.label("fmain_p1v")
        for u in range(16):
            cur = u & 1
            boundary(u)
            anchors = []
            for sb in range(8):
                for nb in range(4):
                    c = "0" if u == 0 else None
                    if mat == 0: anchors.append(mf(ACC(sb, nb), P1W[cur][nb], P1C[cur][sb], c))
                    else: anchors.append(mf(ACC(sb, nb), P1C[cur][sb], P1W[cur][nb], c))
            gaps = [[] for _ in anchors]
            if u == 15:
                gaps[0] += [f"v_xor_b32 v{vW[4+i]}, {(4+i)*32}, v{vFL}" for i in range(4)]
                spread(gaps, reads(u + 1), 1, 26)
            else:
                spread(gaps, reads(u + 1), 0, 24)
            spread(gaps, step_dmas(u), 1, 12)
            emit_gaps(k, anchors, gaps)
        e("s_nop 7")
        e(f"s_lshr_b32 s{t0}, s{sW}, 1", f"s_and_b32 s{t0}, s{t0}, 1", f"s_lshl_b32 s{t0}, s{t0}, 16",
          f"s_lshl_b32 s{sKST}, s{sP}, 17", f"s_add_u32 s{sKST}, s{sKST}, s{t0}", f"s_and_b32 s{t0}, s{sW}, 1")
        if mat == 0:
            e(f"s_lshl_b32 s{t0}, s{t0}, 11", f"s_add_u32 s{sKST}, s{sKST}, s{t0}")
            for sb in range(8):
                e(f"s_add_u32 s{t0}, s{sKST}, {(sb >> 2) * 32768 + (sb & 3) * 4096}")
                for ee in range(2):
                    a0 = ACC(sb, 2 * ee); a1 = ACC(sb, 2 * ee + 1)
                    e(f"v_cvt_pk_bf16_f32 v{a0}, v{a0}, v{a0+1}", f"v_cvt_pk_bf16_f32 v{a0+1}, v{a0+2}, v{a0+3}",
                      f"v_cvt_pk_bf16_f32 v{a0+2}, v{a1}, v{a1+1}", f"v_cvt_pk_bf16_f32 v{a0+3}, v{a1+2}, v{a1+3}")
                    e(f"buffer_store_dwordx4 {v(a0,4)}, v{vL16}, {s(dKVS,4)}, s{t0} offen offset:{ee*1024} sc1")
        else:
            e(f"s_lshl_b32 s{t0}, s{t0}, 12", f"s_add_u32 s{sKST}, s{sKST}, s{t0}")
            for j in range(4):
                e(f"s_add_u32 s{t0}, s{sKST}, {(j >> 1) * 32768 + 16384 + (j & 1) * 8192}")
                for nb in range(4):
                    a0 = ACC(2 * j, nb); a1 = ACC(2 * j + 1, nb)
                    e(f"v_cvt_pk_bf16_f32 v{a0}, v{a0}, v{a0+1}", f"v_cvt_pk_bf16_f32 v{a0+1}, v{a0+2}, v{a0+3}",
                      f"v_cvt_pk_bf16_f32 v{a0+2}, v{a1}, v{a1+1}", f"v_cvt_pk_bf16_f32 v{a0+3}, v{a1+2}, v{a1+3}")
                    e(f"buffer_store_dwordx4 {v(a0,4)}, v{vL16}, {s(dKVS,4)}, s{t0} offen offset:{nb*1024} sc1")
        vm.issue("kvst", 16)
        if mat == 0: e("s_branch fmain_p2")
    k.label("fmain_p2")
    QA = lambda db, qb: (db * 2 + qb) * 4
    AQ, AK, AV = 64, 72, 80
    e(f"s_lshl_b32 s{sOFF}, s{sW}, 13")
    def kv_dma(off_sgpr, add, nchunk4k):
        out = []
        for c in range(nchunk4k):
            out += [f"s_add_u32 s{t0}, s{off_sgpr}, {add + c*4096}", f"s_and_b32 m0, s{t0}, 0x1ffff", "s_nop 0"]
            for i in range(4):
                out.append(f"buffer_load_dwordx4 v{vL16}, {s(dKV,4)}, s{t0} offen offset:{i*1024} sc1 lds")
        return out
    for u in range(16, 32):
        cur = u & 1
        extra = []
        if u == 19: extra.append("kvst")
        if u == 30: extra.append("flag")
        if u == 31:
            e("s_waitcnt vmcnt(0) lgkmcnt(0)", "s_barrier")
        else:
            boundary(u, extra)
        if u == 19:
            e(f"s_cmp_lg_u32 s{sW}, 0", "s_cbranch_scc1 fmain_nopub1")
            e(f"s_lshl_b32 s{t0}, s{sH}, 2", "v_mov_b32 v192, 1", "v_mov_b32 v193, 0", "s_mov_b64 exec, 1",
              f"buffer_atomic_add v192, v193, {s(dD,4)}, s{t0} offen sc1", "s_mov_b64 exec, -1")
            k.label("fmain_nopub1")
        if u == 29:
            e(f"s_lshl_b32 s{t0}, s{sH}, 2", "v_mov_b32 v193, 0", f"buffer_load_dword v{vFL}, v193, {s(dD,4)}, s{t0} offen sc1")
            vm.issue("flag", 1)
        if u == 30:
            e(f"s_mov_b32 s{t2}, 0")
            k.label("fmain_poll1")
            e(f"v_readfirstlane_b32 s{t1}, v{vFL}", f"s_cmp_ge_u32 s{t1}, 8", "s_cbranch_scc1 fmain_poll1_ok")
            e(f"s_add_u32 s{t2}, s{t2}, 1", f"s_cmp_ge_u32 s{t2}, {SPIN_MAX}", "s_cbranch_scc1 fmain_poll1_ok")
            e("s_sleep 4", f"s_lshl_b32 s{t0}, s{sH}, 2", f"buffer_load_dword v{vFL}, v193, {s(dD,4)}, s{t0} offen sc1",
              "s_waitcnt vmcnt(0)", "s_branch fmain_poll1")
            k.label("fmain_poll1_ok")
        if u == 31:
            e(f"s_cmp_eq_u32 s{sROLE}, 1", "s_cbranch_scc1 fmain_nold0")
            e(kv_dma(sM0A, 0, 1), kv_dma(sOFF, 16384, 2), kv_dma(sOFF, 49152, 2))
            k.label("fmain_nold0")
            e(f"s_add_u32 s{sOFF}, s{sOFF}, {16384 + 65536}")
        anchors = []
        c = "0" if u == 16 else None
        for db in range(8):
            for qb in range(2):
                anchors.append(mf(QA(db, qb), P2W[cur][db], P2X[cur][qb], c))
        for qb in range(2): anchors.append(mf(AQ + 4 * qb, P2W[cur][8], P2X[cur][qb], c))
        for qb in range(2): anchors.append(mf(AK + 4 * qb, P2X[cur][qb], P2W[cur][9], c))
        for qb in range(2): anchors.append(mf(AV + 4 * qb, P2X[cur][qb], P2W[cur][10], c))
        gaps = [[] for _ in anchors]
        if u < 31: spread(gaps, reads(u + 1), 0, 17)
        spread(gaps, step_dmas(u), 1, 9)
        emit_gaps(k, anchors, gaps)

    O = lambda db, qb: (db * 2 + qb) * 4
    SB = [64, 96]
    S = lambda par, kb, qb: SB[par] + (kb * 2 + qb) * 4
    R = [128 + 4 * i for i in range(8)]
    Q = lambda qb, ks: 160 + (qb * 4 + ks) * 4
    NM = [192, 196]
    vl = [200, 201]; vmx = 202; thr = [204, 205]; vPQ = 208; vKa, vVa = 212, 213
    T = list(range(214, 228))
    LMISC = 131072
    e(f"s_mov_b32 s{t2}, {f32(QSCALE)}")
    for ks in range(4):
        for qb in range(2):
            a0 = QA(2 * ks, qb); a1 = QA(2 * ks + 1, qb); d = Q(qb, ks)
            for a_ in (a0, a1):
                for r in range(4): e(f"v_mul_f32 v{a_+r}, s{t2}, v{a_+r}")
            e(f"v_cvt_pk_bf16_f32 v{d}, v{a0}, v{a0+1}", f"v_cvt_pk_bf16_f32 v{d+1}, v{a0+2}, v{a0+3}",
              f"v_cvt_pk_bf16_f32 v{d+2}, v{a1}, v{a1+1}", f"v_cvt_pk_bf16_f32 v{d+3}, v{a1+2}, v{a1+3}")
    e(f"s_mov_b32 s{t2}, {f32(LOG2E)}", f"s_mov_b32 s{t3}, {f32(1e-6)}")
    def phi_pair(a0, dst):
        a1 = a0 + 1
        round_bf16_pair(k, a0, a1, T[0])
        e(f"v_mul_f32 v{T[1]}, s{t2}, v{a0}", f"v_mul_f32 v{T[2]}, s{t2}, v{a1}", f"v_exp_f32 v{T[1]}, v{T[1]}", f"v_exp_f32 v{T[2]}, v{T[2]}",
          f"v_cmp_lt_f32 vcc, 0, v{a0}", f"v_cmp_lt_f32 s[{sMSK}:{sMSK+1}], 0, v{a1}",
          f"v_add_f32 v{a0}, 1.0, v{a0}", f"v_add_f32 v{a1}, 1.0, v{a1}",
          f"v_cndmask_b32 v{a0}, v{T[1]}, v{a0}, vcc", f"v_cndmask_b32 v{a1}, v{T[2]}, v{a1}, s[{sMSK}:{sMSK+1}]")
        round_bf16_pair(k, a0, a1, T[0])
        e(f"v_add_f32 v{a0}, s{t3}, v{a0}", f"v_add_f32 v{a1}, s{t3}, v{a1}", f"v_cvt_pk_bf16_f32 v{dst}, v{a0}, v{a1}")
    for i in range(4): phi_pair(AQ + 2 * i, vPQ + i)
    for i in range(4): phi_pair(AK + 2 * i, 96 + i)
    for i in range(4): e(f"v_cvt_pk_bf16_f32 v{100+i}, v{AV+2*i}, v{AV+2*i+1}")
    for i in range(4): e(f"v_mov_b32 v{104+i}, 0x3f803f80")
    e("s_nop 1")
    e(mf(108, 96, 100, "0"), mf(112, 96, 104, "0"))
    e(f"s_lshl_b32 s{t0}, s{sW}, 11", f"s_add_u32 s{t0}, s{t0}, {LMISC}", f"v_add_u32 v{T[0]}, s{t0}, v{vL16}",
      f"s_lshl_b32 s{t0}, s{sW}, 10", f"s_add_u32 s{t0}, s{t0}, {LMISC+16384}", f"v_add_u32 v{T[1]}, s{t0}, v{vL16}")
    e(f"ds_write_b128 v{T[1]}, {v(vPQ,4)}")
    for i in range(64): e(f"v_mov_b32 v{i}, 0")
    e(f"ds_write_b128 v{T[0]}, v[108:111]", f"ds_write_b128 v{T[0]}, v[112:115] offset:1024")
    e(f"v_mov_b32 v{vl[0]}, 0", f"v_mov_b32 v{vl[1]}, 0", f"v_mov_b32 v{vKa}, v{vL16}", f"v_mov_b32 v{vVa}, v{vL16}")
    e(f"s_and_b32 s{t0}, s{sW}, 1", f"s_lshl_b32 s{t0}, s{t0}, 5", f"v_lshlrev_b32 v{T[2]}, 2, v{vG}", f"v_sub_u32 v{thr[0]}, v{vI16}, v{T[2]}",
      f"v_add_u32 v{thr[0]}, s{t0}, v{thr[0]}", f"v_add_u32 v{thr[1]}, 16, v{thr[0]}")
    e("s_waitcnt vmcnt(16) lgkmcnt(0)", "s_barrier")
    e(f"s_cmp_lg_u32 s{sW}, 4", "s_cbranch_scc1 fmain_nored")
    e(f"v_add_u32 v{T[0]}, {LMISC}, v{vL16}")
    for half in range(2):
        for w_ in range(8):
            e(f"ds_read_b128 {v(64+4*w_,4)}, v{T[0]} offset:{w_*2048 + half*1024}")
        e("s_waitcnt lgkmcnt(0)")
        for w_ in range(1, 8):
            for r in range(4): e(f"v_add_f32 v{64+r}, v{64+r}, v{64+4*w_+r}")
        for r in range(4): e(f"v_mov_b32 v{96+4*half+r}, v{64+r}")
    e(f"s_lshl_b32 s{t0}, s{sH}, 3", f"s_add_u32 s{t0}, s{t0}, s{sP}", f"s_lshl_b32 s{t0}, s{t0}, 11")
    e(f"buffer_store_dwordx4 v[96:99], v{vL16}, {s(dM,4)}, s{t0} offen sc1",
      f"buffer_store_dwordx4 v[100:103], v{vL16}, {s(dM,4)}, s{t0} offen offset:1024 sc1")
    k.label("fmain_nored")

    def kread(i, par, f):
        return f"ds_read_b128 {v(R[i],4)}, v{vKa} offset:{par*32768 + f*1024}"
    def vread(i, par, f):
        return f"ds_read_b128 {v(R[i],4)}, v{vVa} offset:{par*32768 + 16384 + f*1024}"
    def qk_anchors(par, first=False):
        out = []
        for kb in range(4):
            for ks in range(4):
                f = kb * 4 + ks
                for qb in range(2):
                    c = ("0" if first else NM[qb]) if ks == 0 else None
                    out.append(mf(S(par, kb, qb), R[f % 8], Q(qb, ks), c))
        return out
    def pv_anchors(par):
        out = []
        for kk in range(2):
            for db in range(8):
                f = kk * 8 + db
                for qb in range(2):
                    out.append(mf(O(db, qb), R[f % 8], S(par, kk, qb)))
        return out
    def sm_lists(par):
        def exps(kbs):
            return [(kb, qb, r) for kb in kbs for qb in range(2) for r in range(4)]
        A = []; B = []; C = []
        reg = lambda kb, qb, r: S(par, kb, qb) + r
        seq = [(kb, qb, r) for qb in range(2) for kb in (0, 1) for r in range(4)]
        pend = []
        for idx, (kb, qb, r) in enumerate(seq):
            A.append(f"v_exp_f32 v{reg(kb,qb,r)}, v{reg(kb,qb,r)}")
            A += pend; pend = []
            pend.append(f"v_add_f32 v{vl[qb]}, v{vl[qb]}, v{reg(kb,qb,r)}")
            if r % 2 == 1:
                d = S(par, 0, qb) + kb * 2 + (r >> 1)
                pend.append(f"v_cvt_pk_bf16_f32 v{d}, v{reg(kb,qb,r-1)}, v{reg(kb,qb,r)}")
        seq = [(kb, qb, r) for qb in range(2) for kb in (2, 3) for r in range(4)]
        firstB = True
        for idx, (kb, qb, r) in enumerate(seq):
            ex = f"v_exp_f32 v{reg(kb,qb,r)}, v{reg(kb,qb,r)}"
            if firstB:
                A.append(ex); A += pend; pend = []; firstB = False
            else:
                B.append(ex); B += pend; pend = []
            if r % 2 == 1:
                d = S(par, 1, qb) + (kb - 2) * 2 + (r >> 1)
                pend.append(f"v_cvt_pk_bf16_f32 v{d}, v{reg(kb,qb,r-1)}, v{reg(kb,qb,r)}")
            C.append(f"v_add_f32 v{vl[qb]}, v{vl[qb]}, v{reg(kb,qb,r)}")
        B.append(C.pop(0)); B += pend
        return A, B, C
    def max_list(par):
        b = SB[par]
        out = [f"v_max3_f32 v{vmx}, v{b}, v{b+1}, v{b+2}"]
        out.append(f"v_max_f32 v{vmx}, v{vmx}, v{b+3}")
        for i in range(2, 16):
            out.append(f"v_max3_f32 v{vmx}, v{vmx}, v{b+2*i}, v{b+2*i+1}")
        return out
    def mask_block(par):
        out = [f"v_mov_b32 v{T[0]}, 0xff800000"]
        items = [(kb, qb, r) for kb in range(4) for qb in range(2) for r in range(4)]
        for base in range(0, 32, 4):
            for j, (kb, qb, r) in enumerate(items[base:base + 4]):
                out.append(f"v_cmp_le_i32 s[{sMSK+2*j}:{sMSK+2*j+1}], {16*kb + r}, v{thr[qb]}")
            for j, (kb, qb, r) in enumerate(items[base:base + 4]):
                x = S(par, kb, qb) + r
                out.append(f"v_cndmask_b32 v{x}, v{T[0]}, v{x}, s[{sMSK+2*j}:{sMSK+2*j+1}]")
        return out
    def rescale(par, first):
        for qb in range(2):
            x = T[2 + qb]
            regs = [S(par, kb, qb) + r for kb in range(4) for r in range(4)]
            e(f"v_max3_f32 v{x}, v{regs[0]}, v{regs[1]}, v{regs[2]}", f"v_max_f32 v{x}, v{x}, v{regs[3]}")
            for i in range(2, 8): e(f"v_max3_f32 v{x}, v{x}, v{regs[2*i]}, v{regs[2*i+1]}")
            xgroup(k, "v_max_f32", x, T[4])
            if first:
                for r in range(4): e(f"v_sub_f32 v{NM[qb]+r}, 0, v{x}")
            else:
                e(f"v_max_f32 v{x}, 0, v{x}")
                for r in range(4): e(f"v_sub_f32 v{NM[qb]+r}, v{NM[qb]+r}, v{x}")
            for rg in regs: e(f"v_sub_f32 v{rg}, v{rg}, v{x}")
            if not first:
                e(f"v_sub_f32 v{x}, 0, v{x}", f"v_exp_f32 v{x}, v{x}", "s_nop 0", f"v_mul_f32 v{vl[qb]}, v{vl[qb]}, v{x}")
                for db in range(8):
                    for r in range(4): e(f"v_mul_f32 v{O(db,qb)+r}, v{O(db,qb)+r}, v{x}")
        e("s_nop 1")
    def loader_block(lbl):
        return [f"s_cmp_eq_u32 s{sROLE}, 1", f"s_cbranch_scc1 {lbl}"] + kv_dma(sOFF, 0, 2)

    e([kread(i, 0, i) for i in range(8)])
    anchors = qk_anchors(0, first=True)
    gaps = [[] for _ in anchors]; pre = {}
    for sl in range(16):
        if sl % 4 == 0: pre[2 * sl] = f"s_waitcnt lgkmcnt({4 if sl < 12 else 0})"
        if sl < 8: gaps[2 * sl + 1].append(kread(sl, 0, sl + 8))
    emit_gaps(k, anchors, gaps, pre)
    e("s_waitcnt vmcnt(8)", "s_barrier")
    e(loader_block("fmain_nold1")); k.label("fmain_nold1")
    e(f"s_add_u32 s{sOFF}, s{sOFF}, 32768")
    e([kread(i, 1, i) for i in range(8)])
    e(f"s_cmp_lg_u32 s{sN}, 1", "s_cbranch_scc1 fmain_nomask0")
    e(mask_block(0))
    k.label("fmain_nomask0")
    rescale(0, True)
    e(f"s_cmp_lg_u32 s{sW}, 4", "s_cbranch_scc1 fmain_nopub2")
    e(f"s_lshl_b32 s{t0}, s{sH}, 2", f"v_mov_b32 v{T[0]}, 1", f"v_mov_b32 v{T[1]}, 128", "s_waitcnt vmcnt(0)", "s_mov_b64 exec, 1",
      f"buffer_atomic_add v{T[0]}, v{T[1]}, {s(dD,4)}, s{t0} offen sc1", "s_mov_b64 exec, -1")
    k.label("fmain_nopub2")
    e(f"s_mov_b32 s{sT}, 1")
    e(f"s_cmp_eq_u32 s{sN}, 1", "s_cbranch_scc1 fmain_fin0")

    def body(par):
        nx = par ^ 1
        anchors = qk_anchors(nx) + pv_anchors(par)
        gaps = [[] for _ in anchors]; pre = {}
        for sl in range(32):
            if sl % 4 == 0: pre[2 * sl] = ["s_waitcnt lgkmcnt(4)"]
            if sl < 8: gaps[2 * sl + 1].append(kread(sl, nx, sl + 8))
            elif sl < 24: gaps[2 * sl + 1].append(vread(sl % 8, par, sl - 8))
            else: gaps[2 * sl + 1].append(kread(sl % 8, par, sl - 24))
        A, B, C = sm_lists(par)
        ca, cb = cost(A), cost(B)
        gA = min(29, round(45 * ca / (ca + cb)))
        spread(gaps, A, 0, gA)
        spread(gaps, B, gA, 45)
        lb = k.newlabel("nold"); lm = k.newlabel("nomask")
        blk = ["s_waitcnt vmcnt(8) lgkmcnt(4)", "s_barrier"] + loader_block(lb) + [lb + ":"] + [f"s_add_u32 s{sOFF}, s{sOFF}, 32768"]
        if par == 0: blk.append(f"v_xor_b32 v{vKa}, 0x10000, v{vKa}")
        else: blk.append(f"v_xor_b32 v{vVa}, 0x10000, v{vVa}")
        blk += [f"s_add_u32 s{sT}, s{sT}, 1", f"s_cmp_lg_u32 s{sT}, s{sN}", f"s_cbranch_scc1 {lm}"] + mask_block(nx) + [lm + ":"]
        pre[48] = blk
        M = max_list(nx)
        mix = []
        for i in range(max(len(M), len(C))):
            if i < len(M): mix.append(M[i])
            if i < len(C): mix.append(C[i])
        spread(gaps, C[:3], 45, 48)
        mix = []
        C2 = C[3:]
        for i in range(max(len(M), len(C2))):
            if i < len(M): mix.append(M[i])
            if i < len(C2): mix.append(C2[i])
        spread(gaps, mix, 48, 63)
        gaps[63].append(f"v_cmp_lt_f32 vcc, {f32(16.0)}, v{vmx}")
        for i, m in enumerate(anchors):
            if i in pre:
                for x in pre[i]:
                    if x.endswith(":"): k.label(x[:-1])
                    else: e(x)
            e(m); e(gaps[i])
        e(f"s_cbranch_vccnz fmain_resc{nx}")
        k.label(f"fmain_rescret{nx}")
        e(f"s_cmp_eq_u32 s{sT}, s{sN}", f"s_cbranch_scc1 fmain_fin{nx}")
    k.align(3)
    k.label("fmain_loop")
    body(0)
    body(1)
    e("s_branch fmain_loop")
    for par in (0, 1):
        k.label(f"fmain_resc{par}")
        rescale(par, False)
        e(f"s_branch fmain_rescret{par}")
    for par in (1, 0):
        k.label(f"fmain_fin{par}")
        e([vread(i, par, i) for i in range(8)])
        A, B, C = sm_lists(par)
        e(A)
        anchors = pv_anchors(par)
        gaps = [[] for _ in anchors]; pre = {}
        for sl in range(16):
            if sl % 4 == 0: pre[2 * sl] = f"s_waitcnt lgkmcnt({4 if sl < 12 else 0})"
            if sl < 8: gaps[2 * sl + 1].append(vread(sl, par, sl + 8))
        spread(gaps, B, 0, 13)
        spread(gaps, C, 13, 30)
        e("s_nop 1")
        emit_gaps(k, anchors, gaps, pre)
        if par == 1: e("s_branch fmain_tail")
    k.label("fmain_tail")
    def tail_barrier(vmn, lbl):
        e(f"s_waitcnt vmcnt({vmn})", "s_barrier")
        e(loader_block(lbl)); k.label(lbl)
        e(f"s_add_u32 s{sOFF}, s{sOFF}, 32768", f"s_add_u32 s{sN}, s{sN}, 1")
    e(f"s_cmp_ge_u32 s{sN}, s{sNT}", "s_cbranch_scc1 fmain_epi")
    tail_barrier(8, "fmain_nold2")
    k.label("fmain_epi")
    e("s_nop 7")
    e(f"s_lshr_b32 s{t0}, s{sROW}, 4", f"s_mul_i32 s{t0}, s{t0}, {Y_RB}", f"s_lshl_b32 s{t1}, s{sH}, 12", f"s_add_u32 s{sKST}, s{t0}, s{t1}")
    for qb in range(2):
        xgroup(k, "v_add_f32", vl[qb], T[0])
        e(f"v_rcp_f32 v{vl[qb]}, v{vl[qb]}", f"s_add_u32 s{t0}, s{sKST}, {qb * Y_RB}")
        for ks in range(4):
            a0 = O(2 * ks, qb); a1 = O(2 * ks + 1, qb)
            for a_ in (a0, a1):
                for r in range(4): e(f"v_mul_f32 v{a_+r}, v{a_+r}, v{vl[qb]}")
            e(f"v_cvt_pk_bf16_f32 v{a0}, v{a0}, v{a0+1}", f"v_cvt_pk_bf16_f32 v{a0+1}, v{a0+2}, v{a0+3}",
              f"v_cvt_pk_bf16_f32 v{a0+2}, v{a1}, v{a1+1}", f"v_cvt_pk_bf16_f32 v{a0+3}, v{a1+2}, v{a1+3}")
            e(f"buffer_store_dwordx4 {v(a0,4)}, v{vL16}, {s(dY,4)}, s{t0} offen offset:{ks*1024}")
    e(f"s_cmp_eq_u32 s{sROLE}, 1", "s_cbranch_scc1 fmain_end")
    e(f"s_cmp_ge_u32 s{sN}, s{sNT}", "s_cbranch_scc1 fmain_oa")
    tail_barrier(16, "fmain_nold3")
    k.label("fmain_tl")
    e(f"s_cmp_ge_u32 s{sN}, s{sNT}", "s_cbranch_scc1 fmain_oa")
    tail_barrier(8, "fmain_nold4")
    e("s_branch fmain_tl")
    k.label("fmain_oa")
    e(f"s_lshl_b32 s{t0}, s{sW}, 10", f"s_add_u32 s{t0}, s{t0}, {LMISC + 16384 + 4096}", f"v_add_u32 v{T[1]}, s{t0}, v{vL16}",
      f"ds_read_b128 v[128:131], v{T[1]}")
    e(f"s_lshl_b32 s{t0}, s{sH}, 2", f"v_mov_b32 v{T[1]}, 128", f"s_mov_b32 s{t3}, 0")
    k.label("fmain_poll2")
    e(f"buffer_load_dword v{T[0]}, v{T[1]}, {s(dD,4)}, s{t0} offen sc1", "s_waitcnt vmcnt(0)",
      f"v_readfirstlane_b32 s{t2}, v{T[0]}", f"s_cmp_ge_u32 s{t2}, 8", "s_cbranch_scc1 fmain_poll2_ok",
      f"s_add_u32 s{t3}, s{t3}, 1", f"s_cmp_ge_u32 s{t3}, {SPIN_MAX}", "s_cbranch_scc1 fmain_poll2_ok", "s_sleep 4", "s_branch fmain_poll2")
    k.label("fmain_poll2_ok")
    e(f"s_lshl_b32 s{t0}, s{sH}, 14")
    for pp in range(8):
        e(f"s_add_u32 s{t1}, s{t0}, {pp*2048}")
        e(f"buffer_load_dwordx4 {v(8*pp,4)}, v{vL16}, {s(dM,4)}, s{t1} offen sc1",
          f"buffer_load_dwordx4 {v(8*pp+4,4)}, v{vL16}, {s(dM,4)}, s{t1} offen offset:1024 sc1")
    e("s_waitcnt vmcnt(0) lgkmcnt(0)")
    for pp in range(1, 8):
        for r in range(8): e(f"v_add_f32 v{r}, v{r}, v{8*pp+r}")
    e("v_cvt_pk_bf16_f32 v64, v0, v1", "v_cvt_pk_bf16_f32 v65, v2, v3", "v_cvt_pk_bf16_f32 v66, v4, v5", "v_cvt_pk_bf16_f32 v67, v6, v7")
    e("s_nop 1")
    srcs = [vPQ, vPQ + 2, 128, 130]
    for i, pq in enumerate(srcs):
        e(f"v_mfma_f32_16x16x16_bf16 {v(72+8*i,4)}, v[64:65], {v(pq,2)}, 0", f"v_mfma_f32_16x16x16_bf16 {v(76+8*i,4)}, v[66:67], {v(pq,2)}, 0")
    e(f"s_lshr_b32 s{t0}, s{sH}, 1", f"s_add_u32 s{t0}, s{t0}, 128", f"s_lshl_b32 s{t0}, s{t0}, 10", f"s_and_b32 s{t1}, s{sH}, 1",
      f"s_lshl_b32 s{t1}, s{t1}, 3", f"s_add_u32 s{sKST}, s{t0}, s{t1}", f"s_mov_b32 s{t3}, {f32(1e-6)}")
    e("s_nop 3")
    for i in range(4):
        nb_, db_ = 72 + 8 * i, 76 + 8 * i
        rowreg = sROW if i < 2 else sROWP
        e(f"s_lshr_b32 s{t0}, s{rowreg}, 4", f"s_add_u32 s{t0}, s{t0}, {i & 1}", f"s_mul_i32 s{t0}, s{t0}, {Y_RB}", f"s_add_u32 s{t0}, s{t0}, s{sKST}")
        round_bf16_pair(k, nb_, nb_ + 1, T[0]); round_bf16_pair(k, nb_ + 2, nb_ + 3, T[0])
        e(f"v_cvt_pk_bf16_f32 v{db_}, v{db_}, v{db_}", f"v_lshlrev_b32 v{db_}, 16, v{db_}", f"v_add_f32 v{db_}, s{t3}, v{db_}",
          f"v_cvt_pk_bf16_f32 v{db_}, v{db_}, v{db_}", f"v_lshlrev_b32 v{db_}, 16, v{db_}", f"v_rcp_f32 v{db_}, v{db_}", "s_nop 0")
        for r in range(4): e(f"v_mul_f32 v{nb_+r}, v{nb_+r}, v{db_}")
        e(f"v_cvt_pk_bf16_f32 v{nb_}, v{nb_}, v{nb_+1}", f"v_cvt_pk_bf16_f32 v{nb_+1}, v{nb_+2}, v{nb_+3}")
        e(f"buffer_store_dwordx2 {v(nb_,2)}, v{vL16}, {s(dY,4)}, s{t0} offen")
    k.label("fmain_end")
    e("s_endpgm")
    return k

def gen_out(opt):
    D = opt.get("depth", 5)
    NSLOT = 8
    k = Kernel("fout_kernel", (256, 1, 1), (256, 1, 1), 131072, vgpr=256, sgpr=100)
    e = k.e
    sWO, sWOB, sOUT, sWS = 4, 6, 8, 10
    sW, sRB, sNB = 22, 23, 24
    dY, dWA, dWB, dO, dG = 32, 36, 40, 44, 48
    sM0, sYO = 52, 53
    t0, t1, t2, t3 = 76, 77, 78, 79
    vL16, vI16, vG = 255, 254, 253
    vDW = [249, 250, 251, 252]; vT = [245, 246, 247, 248]; vGT = [241, 242, 243, 244]
    ACCA, ACCB = 0, 64
    WF = [[128 + 4 * i for i in range(4)], [144 + 4 * i for i in range(4)]]
    YF = [[160 + 16 * d + 4 * i for i in range(4)] for d in range(D)]
    assert 160 + 16 * D <= 241
    e("s_cmp_ge_u32 s2, 256", "s_cbranch_scc1 fout_end")
    e("s_load_dwordx2 s[4:5], s[0:1], 16", "s_load_dwordx2 s[6:7], s[0:1], 64", "s_load_dwordx2 s[8:9], s[0:1], 80", "s_load_dwordx2 s[10:11], s[0:1], 96")
    e("v_lshrrev_b32 v1, 6, v0", "v_and_b32 v0, 63, v0", f"v_readfirstlane_b32 s{sW}, v1")
    e(f"v_lshlrev_b32 v{vL16}, 4, v0", f"v_and_b32 v{vI16}, 15, v0", f"v_lshrrev_b32 v{vG}, 4, v0")
    e(f"s_and_b32 s{sRB}, s2, 7", f"s_lshl_b32 s{sRB}, s{sRB}, 2", f"s_lshr_b32 s{t0}, s2, 6", f"s_add_u32 s{sRB}, s{sRB}, s{t0}",
      f"s_lshr_b32 s{sNB}, s2, 3", f"s_and_b32 s{sNB}, s{sNB}, 7")
    e("v_lshrrev_b32 v2, 3, v0", "v_lshlrev_b32 v2, 10, v2", "v_bfe_u32 v3, v0, 1, 2", f"v_xor_b32 v3, v3, v{vG}", "v_lshl_add_u32 v2, v3, 5, v2",
      "v_and_b32 v3, 1, v0", "v_lshl_add_u32 v2, v3, 4, v2")
    for i in range(4): e(f"v_add_u32 v{vDW[i]}, {i*7168}, v2")
    e(f"s_lshl_b32 s{sM0}, s{sW}, 15")
    e(f"v_lshrrev_b32 v2, 2, v{vI16}", f"v_lshl_add_u32 v2, v{vG}, 2, v2", "v_bfe_u32 v3, v2, 1, 2", "v_lshlrev_b32 v2, 7, v2", "v_lshl_add_u32 v2, v3, 5, v2",
      f"v_and_b32 v3, 3, v{vI16}", "v_lshl_add_u32 v2, v3, 3, v2", f"v_add_u32 v2, s{sM0}, v2")
    for c in range(4): e(f"v_xor_b32 v{vT[c]}, {c*32}, v2")
    e("s_waitcnt lgkmcnt(0)")
    e(f"s_mul_i32 s{t0}, s{sRB}, {4*Y_RB}", f"s_add_u32 s{t0}, s{t0}, {WS_Y}")
    srd(k, dY, sWS, sWS + 1, 4 * Y_RB, f"s{t0}")
    e(f"s_lshl_b32 s{t0}, s{sNB}, 7", f"s_lshl_b32 s{t1}, s{sW}, 17", f"s_add_u32 s{t1}, s{t1}, s{t0}", f"s_sub_u32 s{t2}, {512*1024}, s{t1}")
    srd(k, dWA, sWO, sWO + 1, f"s{t2}", f"s{t1}")
    e(f"s_lshl_b32 s{t1}, s{sW}, 20", f"s_add_u32 s{t1}, s{t1}, s{t0}", f"s_sub_u32 s{t2}, {4096*1024}, s{t1}")
    srd(k, dWB, sWOB, sWOB + 1, f"s{t2}", f"s{t1}")
    vm = VM()
    steps = [("B", i) for i in range(32)] + [("A", i) for i in range(4)]
    e(f"s_lshl_b32 s{sYO}, s{sW}, 15", f"s_lshl_b32 s{t3}, s{sW}, 12", f"s_add_u32 s{t3}, s{t3}, {128*1024}")
    def loads(si):
        kind, i = steps[si]
        out = [f"s_add_u32 m0, s{sM0}, {(si % NSLOT) * 4096}", f"s_mov_b32 s{t0}, {i * 32768}"]
        for j in range(4):
            out.append(f"buffer_load_dwordx4 v{vDW[j]}, {s(dWB if kind == 'B' else dWA,4)}, s{t0} offen offset:{j*1024} lds")
        out2 = []
        for sb in range(4):
            base = sYO if kind == "B" else t3
            out2.append([f"s_add_u32 s{t1}, s{base}, {sb * Y_RB + (i & ~3) * 1024}",
                         f"buffer_load_dwordx4 {v(YF[si % D][sb],4)}, v{vL16}, {s(dY,4)}, s{t1} offen offset:{(i & 3) * 1024}"])
        return out, out2
    def issue_w(si):
        vm.issue(("W", si), 4); return loads(si)[0]
    def issue_y(si):
        vm.issue(("Y", si), 4); return loads(si)[1]
    def trreads(si):
        out = []
        for c in range(4):
            for j in range(2):
                out.append(f"ds_read_b64_tr_b16 {v(WF[si & 1][c] + 2*j, 2)}, v{vT[c]} offset:{(si % NSLOT)*4096 + j*2048}")
        return out
    NS = len(steps)
    DWD = min(NSLOT - 1, D + 1)
    for si in range(max(D, DWD)):
        if si < DWD: e(issue_w(si))
        if si < D - 1: e(issue_y(si))
    srd(k, dO, sOUT, sOUT + 1, 2048 * 1024)
    srd(k, dG, sWS, sWS + 1, 8192, WS_G)
    e(f"v_lshlrev_b32 v2, 2, v{vI16}", f"s_lshl_b32 s{t0}, s{sRB}, 8")
    for sb in range(4): e(f"buffer_load_dword v{vGT[sb]}, v2, {s(dG,4)}, s{t0} offen offset:{sb*64}")
    vm.issue("g", 4)
    n = vm.wait({("W", 0)})
    e(f"s_waitcnt vmcnt({n})")
    e(trreads(0))
    for si in range(NS):
        kind, i = steps[si]
        need = {("Y", si)}
        if si + 1 < NS: need.add(("W", si + 1))
        n = vm.wait(need)
        e(f"s_waitcnt vmcnt({n}) lgkmcnt(0)")
        acc = ACCB if kind == "B" else ACCA
        anchors = []
        for sb in range(4):
            for c in range(4):
                anchors.append(mf(acc + (sb * 4 + c) * 4, WF[si & 1][c], YF[si % D][sb], "0" if i == 0 else None))
        gaps = [[] for _ in anchors]
        if si + 1 < NS: spread(gaps, trreads(si + 1), 0, 8)
        if si + D - 1 < NS: spread(gaps, issue_y(si + D - 1), 0, 8)
        if si + DWD < NS: gaps[9].append(issue_w(si + DWD))
        emit_gaps(k, anchors, gaps)
    e("s_waitcnt vmcnt(0)", "s_nop 7")
    for sb in range(4):
        e(f"v_sub_f32 v128, 1.0, v{vGT[sb]}", "v_cvt_pk_bf16_f32 v128, v128, v128", "v_lshlrev_b32 v128, 16, v128")
        for c in range(4):
            for r in range(4):
                x = (sb * 4 + c) * 4 + r
                e(f"v_mul_f32 v{ACCB+x}, v128, v{ACCB+x}", f"v_fmac_f32 v{ACCB+x}, v{vGT[sb]}, v{ACCA+x}")
    e(f"v_add_u32 v128, s{sM0}, v{vL16}")
    for sb in range(4):
        for c in range(4):
            e(f"ds_write_b128 v128, {v(ACCB + (sb*4+c)*4, 4)} offset:{(sb*4+c)*1024}")
    e("s_waitcnt lgkmcnt(0)", "s_barrier")
    e(f"s_lshl_b32 s{t0}, s{sW}, 12", f"v_add_u32 v128, s{t0}, v{vL16}", "v_add_u32 v129, 0x10000, v128")
    for src in range(4):
        for c in range(4):
            e(f"ds_read_b128 {v((src*4+c)*4,4)}, v{128 + (src >> 1)} offset:{(src & 1)*32768 + c*1024}")
        if src == 2: e("s_waitcnt lgkmcnt(8)")
    e("s_waitcnt lgkmcnt(0)")
    for c in range(4):
        for r in range(4):
            x = c * 4 + r
            e(f"v_add_f32 v{x}, v{x}, v{16+x}", f"v_add_f32 v{32+x}, v{32+x}, v{48+x}", f"v_add_f32 v{x}, v{x}, v{32+x}")
    e(f"v_lshlrev_b32 v130, 10, v{vI16}", f"v_lshl_add_u32 v130, v{vG}, 3, v130",
      f"s_lshl_b32 s{t0}, s{sRB}, 16", f"s_lshl_b32 s{t1}, s{sW}, 14", f"s_add_u32 s{t0}, s{t0}, s{t1}", f"s_lshl_b32 s{t1}, s{sNB}, 7", f"s_add_u32 s{t0}, s{t0}, s{t1}")
    for c in range(4):
        e(f"v_cvt_pk_bf16_f32 v{4*c}, v{4*c}, v{4*c+1}", f"v_cvt_pk_bf16_f32 v{4*c+1}, v{4*c+2}, v{4*c+3}")
        e(f"buffer_store_dwordx2 {v(4*c,2)}, v130, {s(dO,4)}, s{t0} offen offset:{c*32}")
    k.label("fout_end")
    e("s_endpgm")
    return k

HEADER = """; Kernarg layout for this problem (104 bytes, ptrs only, base s[0:1]):
"""

def main():
    opt = {}
    for a_ in sys.argv[2:]:
        kk, vv = a_.split("="); opt[kk] = int(vv)
    ks = [gen_main(opt), gen_out(opt)]
    bad = 0
    for k in ks:
        bad += check_hazards(k); bad += check_waits(k)
    out = sys.argv[1] if len(sys.argv) > 1 else f"cdna_kernels/{NAME}.s"
    open(out, "w").write(make_file(ks, header=HEADER))
    print("written", out, "problems:", bad, "instr counts:", [len(k.lines) for k in ks])

if __name__ == "__main__":
    main()
```
